```python
import torch

def _softmax(x, axis=-1):
    return torch.softmax(x, dim=axis)
def _gelu(x):
    return torch.nn.functional.gelu(x, approximate="tanh")
def _silu(x):
    return torch.nn.functional.silu(x)
def _sigmoid(x):
    return torch.sigmoid(x)
def _layernorm(x, axis=-1, eps=1e-5):
    m = x.mean(dim=axis, keepdim=True)
    v = x.var(dim=axis, keepdim=True, unbiased=False)
    return (x - m) / torch.sqrt(v + eps)
def _scatter_add(tgt, idx, src, axis=0):
    return tgt.clone().index_add_(axis, idx, src)
def _segment_sum(src, seg, n):
    out = torch.zeros((n,) + src.shape[1:], dtype=src.dtype)
    return out.index_add_(0, seg, src)
def _pad(x, pw):
    flat = tuple(v for pair in reversed(pw) for v in pair)
    return torch.nn.functional.pad(x, flat)

kernel_name = 'recurrent_scan__softmax_full_mha__dense_activation_relu__prompt'

def setup_inputs():

    _w = (lambda a: (lambda t: t.to(torch.bfloat16) if t.is_floating_point() else t)(torch.as_tensor(a)))
    def _A_setup():
        B, S, D = 1, 2048, 640
        return {
            "x": _w((lambda *s: torch.randn(*s, dtype=torch.bfloat16) * 0.05)(B, S, D)),
            "wqkv": _w((lambda *s: torch.randn(*s, dtype=torch.bfloat16) * 0.05)(D, 3 * D)),
            "wo": _w((lambda *s: torch.randn(*s, dtype=torch.bfloat16) * 0.05)(D, D)),
        }
    _A_in = _A_setup()

    def _B_setup():
        B, S, D, Dff = 1, 2048, 640, 1536
        return {
            "x": _w((lambda *s: torch.randn(*s, dtype=torch.bfloat16) * 0.05)(B, S, D)),
            "w1": _w((lambda *s: torch.randn(*s, dtype=torch.bfloat16) * 0.05)(D, Dff)),
            "w2": _w((lambda *s: torch.randn(*s, dtype=torch.bfloat16) * 0.05)(Dff, D)),
        }
    _B_in = _B_setup()

    return {
        "A_x": _A_in["x"],
        "A_wqkv": _A_in["wqkv"],
        "A_wo": _A_in["wo"],
        "B_x": _B_in["x"],
        "B_w1": _B_in["w1"],
        "B_w2": _B_in["w2"],
    }

def reference(A_x, A_wqkv, A_wo, B_x, B_w1, B_w2):
    def _A_ref(x, wqkv, wo):
        B, S, D = x.shape
        H = 32; Dh = D // H
        qkv = (lambda x, *d: x.permute(*d))((x @ wqkv).reshape(B, S, 3, H, Dh), 2, 0, 3, 1, 4)
        q, k, v = qkv[0], qkv[1], qkv[2]
        scale = Dh ** -0.5
        scores = torch.einsum("bhqd,bhkd->bhqk", q, k) * scale
        p = _softmax(scores, axis=-1)
        o = torch.einsum("bhqk,bhkd->bhqd", p, v)
        return (lambda x, *d: x.permute(*d))(o, 0, 2, 1, 3).reshape(B, S, D) @ wo

    def _B_ref(x, w1, w2):
        h = torch.einsum("bsd,df->bsf", x, w1)
        zero = torch.zeros_like(h)
        h = torch.maximum(h, zero)
        return torch.einsum("bsf,fd->bsd", h, w2)

    x = A_x
    xn = _layernorm(x, axis=-1)
    s = _A_ref(xn, A_wqkv, A_wo)
    g = _silu(_B_ref(xn, B_w1, B_w2))
    return x + s * g
```

```python
import subprocess, sys
def kernel(name, body, iters, nwaves, pre="", vgpr=128, accum=None, post=""):
    accum = accum or ((vgpr+3)//4*4)
    s = f"""
.text
.globl {name}
.p2align 8
.type {name},@function
{name}:
  s_load_dwordx2 s[4:5], s[0:1], 0
  s_load_dwordx2 s[6:7], s[0:1], 8
  v_lshrrev_b32 v1, 6, v0
  v_and_b32 v0, 63, v0
  s_nop 1
  v_readfirstlane_b32 s20, v1
  s_waitcnt lgkmcnt(0)
{pre}
  s_barrier
  s_memtime s[8:9]
  s_memrealtime s[12:13]
  s_waitcnt lgkmcnt(0)
  s_mov_b32 s14, {iters}
.p2align 6
{name}_loop:
{body}
  s_sub_u32 s14, s14, 1
  s_cmp_lg_u32 s14, 0
  s_cbranch_scc1 {name}_loop
  s_memtime s[10:11]
  s_memrealtime s[16:17]
  s_waitcnt lgkmcnt(0)
{post}
  s_sub_u32 s10, s10, s8
  s_sub_u32 s16, s16, s12
  s_mul_i32 s21, s2, {nwaves}
  s_add_u32 s21, s21, s20
  s_lshl_b32 s21, s21, 3
  v_mov_b32 v2, s10
  v_mov_b32 v3, s16
  v_mov_b32 v1, s21
  v_cmp_eq_u32 vcc, 0, v0
  s_and_saveexec_b64 s[22:23], vcc
  s_cbranch_execz {name}_end
  global_store_dwordx2 v1, v[2:3], s[4:5]
{name}_end:
  s_endpgm
.section .rodata,"a"
.p2align 6
.amdhsa_kernel {name}
  .amdhsa_next_free_vgpr {vgpr}
  .amdhsa_next_free_sgpr 64
  .amdhsa_accum_offset {accum}
  .amdhsa_group_segment_fixed_size 0
  .amdhsa_kernarg_size 16
  .amdhsa_user_sgpr_count 2
  .amdhsa_user_sgpr_kernarg_segment_ptr 1
  .amdhsa_system_sgpr_workgroup_id_x 1
  .amdhsa_float_denorm_mode_32 3
.end_amdhsa_kernel
"""
    meta = f"""  - .name: {name}
    .symbol: {name}.kd
    .kernarg_segment_size: 16
    .kernarg_segment_align: 8
    .group_segment_fixed_size: 0
    .private_segment_fixed_size: 0
    .wavefront_size: 64
    .sgpr_count: 64
    .vgpr_count: {vgpr}
    .max_flat_workgroup_size: 1024
    .args:
      - {{.name: kernargs, .size: 16, .offset: 0, .value_kind: by_value}}
"""
    return s, meta
def build(fname, kernels):
    s = '.amdgcn_target "amdgcn-amd-amdhsa--gfx950"\n'
    metas = ""
    for k, m in kernels:
        s += k; metas += m
    s += "\n.amdgpu_metadata\n---\namdhsa.version: [1, 2]\namdhsa.kernels:\n" + metas + "...\n.end_amdgpu_metadata\n"
    open(fname + ".s", "w").write(s)
    r = subprocess.run(["clang", "-x", "assembler", "-target", "amdgcn-amd-amdhsa", "-mcpu=gfx950", fname + ".s", "-o", fname + ".co"], capture_output=True, text=True)
    if r.returncode:
        print(r.stderr[:3000]); sys.exit(1)
```

```python
from mbgen import *
ks=[]; specs=[]
J="\n".join
def pre(nw):
    L=["  s_mov_b32 s24, s6","  s_and_b32 s25, s7, 0xffff","  s_mov_b32 s26, 0x4000000","  s_mov_b32 s27, 0x20000",
       f"  s_lshl_b32 s28, s20, 6","  v_add_u32 v4, s28, v0","  v_lshlrev_b32 v4, 4, v4", "  s_lshl_b32 s29, s2, 12"]
    n = 131072 // (nw*64*16)
    for i in range(n):
        L += [f"  v_add_u32 v5, {i*nw*64*16}, v4", "  buffer_load_dwordx4 v[8:11], v5, s[24:27], s29 offen","  s_waitcnt vmcnt(0)","  ds_write_b128 v5, v[8:11]"]
    L += ["  s_waitcnt lgkmcnt(0)","  v_lshlrev_b32 v2, 4, v0", f"  s_lshl_b32 s28, s20, 12", "  v_add_u32 v2, s28, v2"]
    L += [f"  v_mov_b32 v{i}, 0" for i in range(64,240)]
    return J(L)
def body32(nA,nB,steps):
    L=[]
    accb=64
    fr=[8, 8+4*(nA+nB)]
    for s in range(steps):
        cur=fr[s%2]; nxt=fr[(s+1)%2]
        rd=[f"  ds_read_b128 v[{nxt+4*i}:{nxt+4*i+3}], v2 offset:{((s*(nA+nB)+i)*1024)%61440}" for i in range(nA+nB)]
        L.append("  s_waitcnt lgkmcnt(0)")
        k=0
        for i in range(nA):
            for j in range(nB):
                d=accb+16*(i*nB+j)
                L.append(f"  v_mfma_f32_32x32x16_bf16 v[{d}:{d+15}], v[{cur+4*i}:{cur+4*i+3}], v[{cur+4*(nA+j)}:{cur+4*(nA+j)+3}], v[{d}:{d+15}]")
                if k<len(rd): L.append(rd[k]); k+=1
        L+=rd[k:]
    return J(L)
def body16(nA,nB,steps):
    L=[]
    accb=128 if nA*nB<=16 else 112
    fr=[8, 8+4*(nA+nB)]
    for s in range(steps):
        cur=fr[s%2]; nxt=fr[(s+1)%2]
        rd=[f"  ds_read_b128 v[{nxt+4*i}:{nxt+4*i+3}], v2 offset:{((s*(nA+nB)+i)*1024)%61440}" for i in range(nA+nB)]
        L.append("  s_waitcnt lgkmcnt(0)")
        k=0; c=0
        for i in range(nA):
            for j in range(nB):
                d=accb+4*(i*nB+j)
                L.append(f"  v_mfma_f32_16x16x32_bf16 v[{d}:{d+3}], v[{cur+4*i}:{cur+4*i+3}], v[{cur+4*(nA+j)}:{cur+4*(nA+j)+3}], v[{d}:{d+3}]")
                c+=1
                if c%2==0 and k<len(rd): L.append(rd[k]); k+=1
        L+=rd[k:]
    return J(L)
IT=400
cfg=[("a32_2x2_8w", body32(2,2,8), 8, IT, 128),
     ("b16_4x4_8w", body16(4,4,4), 8, IT, 200),
     ("c32_4x2_4w", body32(4,2,8), 4, IT, 200),
     ("d16_8x4_4w", body16(8,4,4), 4, IT, 240),
     ]
for nm,b,nw,it,vg in cfg:
    ks.append(kernel("k_"+nm,b,it,nw,pre=pre(nw),vgpr=256)); specs.append(f"k_{nm}:256:{nw*64}:140000")
build("mb6",ks)
open("mb6.args","w").write(" ".join(specs+specs))
```
